```python
import torch

def _softmax(x, axis=-1):
    return torch.softmax(x, dim=axis)
def _gelu(x):
    return torch.nn.functional.gelu(x, approximate="tanh")
def _silu(x):
    return torch.nn.functional.silu(x)
def _sigmoid(x):
    return torch.sigmoid(x)
def _layernorm(x, axis=-1, eps=1e-5):
    m = x.mean(dim=axis, keepdim=True)
    v = x.var(dim=axis, keepdim=True, unbiased=False)
    return (x - m) / torch.sqrt(v + eps)
def _scatter_add(tgt, idx, src, axis=0):
    return tgt.clone().index_add_(axis, idx, src)
def _segment_sum(src, seg, n):
    out = torch.zeros((n,) + src.shape[1:], dtype=src.dtype)
    return out.index_add_(0, seg, src)
def _pad(x, pw):
    flat = tuple(v for pair in reversed(pw) for v in pair)
    return torch.nn.functional.pad(x, flat)

kernel_name = 'standalone__attention_interact_autoint__recsys'

def setup_inputs():

    _w = (lambda a: (lambda t: t.to(torch.bfloat16) if t.is_floating_point() else t)(torch.as_tensor(a)))
    B, F = 4096, 26
    D = max(2, (128 // 2) * 2)
    H = 2
    Dh = D // H
    return {
        "e": _w((lambda *s: torch.randn(*s, dtype=torch.bfloat16) * 0.05)(B, F, D).to(float)),
        "wq": _w((lambda *s: torch.randn(*s, dtype=torch.bfloat16) * 1.6)(H, D, Dh).to(float)),
        "wk": _w((lambda *s: torch.randn(*s, dtype=torch.bfloat16) * 1.6)(H, D, Dh).to(float)),
        "wv": _w((lambda *s: torch.randn(*s, dtype=torch.bfloat16) * 0.05)(H, D, Dh).to(float)),
        "wres": _w((lambda *s: torch.randn(*s, dtype=torch.bfloat16) * 0.05)(D, D).to(float)),
    }

def reference(e, wq, wk, wv, wres):
    H, D, Dh = wq.shape[0], wq.shape[1], wq.shape[2]
    B, F = e.shape[0], e.shape[1]
    q = torch.einsum('bfd,hdk->bhfk', e, wq)
    k = torch.einsum('bfd,hdk->bhfk', e, wk)
    v = torch.einsum('bfd,hdk->bhfk', e, wv)
    scale = float(Dh) ** -0.5
    scores = torch.einsum('bhfk,bhgk->bhfg', q, k) * scale
    attn = _softmax(scores, axis=-1)
    attn = (lambda x, dt: x.to(dt))(attn, v.dtype)
    ctx = torch.einsum('bhfg,bhgk->bhfk', attn, v)
    ctx = (lambda x, *d: x.permute(*d))(ctx, 0, 2, 1, 3).reshape(B, F, H * Dh)
    res = torch.einsum('bfd,de->bfe', e, wres)
    out = ctx + res
    mask = (lambda x, dt: x.to(dt))(out > 0, out.dtype)
    return out * mask
```

```python
import sys
L=[]
def e(s): L.append("    "+s)
NAME="standalone__attention_interact_autoint__recsys"
hdr=open("cdna_kernels/%s.s.ref"%NAME).read().split("; Override launch")[0]
E0=8; RING=40; ACC0=56; ACC1=72; P1=88; P2=104; T0=120
R=4
def vr(a,n): return "v[%d:%d]"%(a,a+n-1)

e("s_cmp_ge_u32 s2, 256")
e("s_cbranch_scc1 L_done")
e("s_load_dwordx8 s[4:11], s[0:1], 0")
e("s_load_dwordx4 s[12:15], s[0:1], 32")
e("v_and_b32 v1, 63, v0")
e("v_lshrrev_b32 v2, 6, v0")
e("s_waitcnt lgkmcnt(0)")
for i,(d,b,n) in enumerate([(16,4,27262976),(20,6,32768),(24,8,32768),(28,10,32768),(32,12,32768),(36,14,27262976)]):
    e("s_mov_b32 s%d, s%d"%(d,b)); e("s_and_b32 s%d, s%d, 0xffff"%(d+1,b+1)); e("s_mov_b32 s%d, %d"%(d+2,n)); e("s_mov_b32 s%d, 0x20000"%(d+3))
e("s_lshl_b32 s3, s2, 4")
e("v_add_u32 v2, s3, v2")
e("s_mov_b32 s40, 6656")
e("v_mul_lo_u32 v2, v2, s40")
e("v_and_b32 v3, 31, v1")
e("v_lshrrev_b32 v4, 5, v1")
e("v_lshl_add_u32 v2, v3, 8, v2")
e("v_lshl_add_u32 v5, v4, 4, v2")
e("v_lshlrev_b32 v6, 4, v0")
W=ACC0
for m,srd in enumerate([20,24,28,32]):
    for i in range(2):
        e("buffer_load_dwordx4 %s, v6, s[%d:%d], 0 offen offset:0"%(vr(W+8*m+4*i,4),srd,srd+3) if i==0 else
          "v_add_u32 v7, 16384, v6\n    buffer_load_dwordx4 %s, v7, s[%d:%d], 0 offen"%(vr(W+8*m+4*i,4),srd,srd+3))
for ks in range(8):
    e("buffer_load_dwordx4 %s, v5, s[16:19], 0 offen offset:%d"%(vr(E0+4*ks,4),ks*32))
e("v_lshrrev_b32 v6, 3, v0")
e("v_and_b32 v7, 3, v6")
e("v_bfe_u32 v%d, v0, 2, 1"%T0)
e("v_xor_b32 v7, v7, v%d"%T0)
e("v_lshlrev_b32 v7, 6, v7")
e("v_lshl_add_u32 v7, v6, 8, v7")
e("v_and_b32 v%d, 3, v0"%T0)
e("v_lshl_add_u32 v7, v%d, 4, v7"%T0)
e("v_xor_b32 v%d, 128, v7"%(T0+1))
e("v_lshrrev_b32 v6, 4, v0")
e("v_and_b32 v%d, 3, v6"%(T0+2))
e("v_bfe_u32 v%d, v0, 2, 2"%(T0+3))
e("v_xor_b32 v%d, v%d, v%d"%(T0+2,T0+2,T0+3))
e("v_lshlrev_b32 v%d, 6, v%d"%(T0+2,T0+2))
e("v_lshl_add_u32 v%d, v6, 8, v%d"%(T0+2,T0+2))
e("v_and_b32 v%d, 3, v0"%(T0+3))
e("v_lshl_add_u32 v%d, v%d, 4, v%d"%(T0+2,T0+3,T0+2))
e("v_add_u32 v%d, 0x18000, v%d"%(T0+2,T0+2))
e("v_add_u32 v%d, 0x10000, v7"%(T0+3))
e("v_add_u32 v%d, 0x10000, v%d"%(T0+4,T0+1))
e("s_waitcnt vmcnt(8)")
for m in range(2):
    e("ds_write_b128 v7, %s offset:%d"%(vr(W+8*m,4),m*32768))
    e("ds_write_b128 v%d, %s offset:%d"%(T0+1,vr(W+8*m+4,4),m*32768))
e("ds_write_b128 v%d, %s"%(T0+3,vr(W+16,4)))
e("ds_write_b128 v%d, %s"%(T0+4,vr(W+20,4)))
e("ds_write_b128 v%d, %s"%(T0+2,vr(W+24,4)))
e("ds_write_b128 v%d, %s offset:16384"%(T0+2,vr(W+28,4)))
e("v_bfe_u32 v6, v1, 2, 2")
e("v_lshl_add_u32 v7, v4, 3, v6")
e("v_lshlrev_b32 v7, 8, v7")
e("v_lshl_add_u32 v7, v6, 6, v7")
e("v_and_b32 v%d, 3, v1"%T0)
e("v_bfe_u32 v%d, v1, 4, 1"%(T0+1))
e("v_lshl_add_u32 v6, v%d, 5, v7"%(T0+1))
e("v_lshl_add_u32 v6, v%d, 3, v6"%T0)
e("v_lshl_add_u32 v7, v%d, 4, v7"%(T0+1))
e("v_and_b32 v%d, 1, v%d"%(T0+2,T0))
e("v_lshl_add_u32 v7, v%d, 5, v7"%(T0+2))
e("v_lshrrev_b32 v%d, 1, v%d"%(T0+2,T0))
e("v_lshl_add_u32 v7, v%d, 3, v7"%(T0+2))
e("v_add_u32 v7, 0x10000, v7")
e("v_cmp_lt_u32 s[42:43], 31, v1")
e("v_cmp_gt_u32 s[44:45], 26, v3")
e("v_mov_b32 v5, 0xff800000")
e("s_mov_b32 s41, 0x3e38aa3b")
e("s_waitcnt lgkmcnt(0)")
e("s_barrier")

jobs=[]
def pack(dst,src,n):
    o=[]
    for i in range(n): o.append("v_cvt_pk_bf16_f32 v%d, v%d, v%d"%(dst+i,src+2*i,src+2*i+1))
    return o
NOPS=["s_nop 7","s_nop 4"]
def softmax():
    a=ACC0; o=[]
    for s in range(4):
        tt=s>>1; hf=s&1
        o.append("v_mfma_f32_32x32x16_bf16 %s, %s, %s, %s"%(vr(a,16),vr(P2+8*tt+4*hf,4),vr(P1+8*tt+4*hf,4),"0" if s==0 else vr(a,16)))
    o+=NOPS
    t=T0;t2=T0+1
    o.append("v_cndmask_b32 v%d, v%d, v5, s[42:43]"%(a+12,a+12))
    o.append("v_cndmask_b32 v%d, v%d, v5, s[42:43]"%(a+13,a+13))
    o.append("v_max3_f32 v%d, v%d, v%d, v%d"%(t,a,a+1,a+2))
    for i in range(3,13,2): o.append("v_max3_f32 v%d, v%d, v%d, v%d"%(t,t,a+i,a+i+1))
    o.append("v_max_f32 v%d, v%d, v%d"%(t,t,a+13))
    o.append("v_mov_b32 v%d, v%d"%(t2,t)); o.append("s_nop 1")
    o.append("v_permlane32_swap_b32 v%d, v%d"%(t,t2))
    o.append("s_nop 1")
    o.append("v_max_f32 v%d, v%d, v%d"%(t,t,t2))
    o.append("v_mul_f32 v%d, s41, v%d"%(t,t))
    for i in range(14): o.append("v_fma_f32 v%d, v%d, s41, -v%d"%(a+i,a+i,t))
    for i in range(14): o.append("v_exp_f32 v%d, v%d"%(a+i,a+i))
    o.append("v_add_f32 v%d, v%d, v%d"%(t,a,a+1))
    for i in range(2,14): o.append("v_add_f32 v%d, v%d, v%d"%(t,t,a+i))
    o.append("v_mov_b32 v%d, v%d"%(t2,t)); o.append("s_nop 1")
    o.append("v_permlane32_swap_b32 v%d, v%d"%(t,t2))
    o.append("s_nop 1")
    o.append("v_add_f32 v%d, v%d, v%d"%(t,t,t2))
    o.append("v_rcp_f32 v%d, v%d"%(t,t)); o.append("s_nop 0")
    for i in range(14): o.append("v_mul_f32 v%d, v%d, v%d"%(a+i,a+i,t))
    o+=pack(P1,a,7)
    o.append("v_mov_b32 v%d, 0"%(P1+7))
    return o
def final(h):
    o=[]
    for t,a in enumerate((ACC0,ACC1)):
        for s in range(2):
            o.append("v_mfma_f32_32x32x16_bf16 %s, %s, %s, %s"%(vr(a,16),vr(P2+8*t+4*s,4),vr(P1+4*s,4),vr(a,16)))
    o+=NOPS
    o.append("s_mov_b64 s[46:47], exec")
    o.append("s_mov_b64 exec, s[44:45]")
    for t,a in enumerate((ACC0,ACC1)):
        for i in range(16): o.append("v_max_f32 v%d, 0, v%d"%(a+i,a+i))
        o+=pack(P2+8*t,a,8)
        o.append("v_lshl_add_u32 v%d, v4, 5, v2"%(T0+2))
        o.append("buffer_store_dwordx4 %s, v%d, s[36:39], 0 offen offset:%d"%(vr(P2+8*t,4),T0+2,128*h+64*t))
        o.append("buffer_store_dwordx4 %s, v%d, s[36:39], 0 offen offset:%d"%(vr(P2+8*t+4,4),T0+2,128*h+64*t+16))
    o.append("s_mov_b64 exec, s[46:47]")
    return o
for h in range(2):
    for mat,mode,post in ((0,'A',NOPS+pack(P1,ACC0,8)+pack(P1+8,ACC1,8)),
                          (1,'A',NOPS+pack(P2,ACC0,8)+pack(P2+8,ACC1,8)+["s_nop 1"]+softmax()),
                          (2,'B',NOPS+pack(P2,ACC0,8)+pack(P2+8,ACC1,8)),
                          (3,'A',["s_nop 1"]+final(h))):
        for t in range(2):
            for ks in range(8):
                jobs.append((mat,2*h+t,ks,(ACC0,ACC1)[t],mode,post if (t==1 and ks==7) else None))
curaddr={}
def issue(j):
    mat,tile,ks,acc,mode,post=jobs[j]
    slot=RING+4*(j%R)
    base="v6" if mat<2 else "v7"
    ar=T0+6+(1 if mat>=2 else 0)
    key=(mat>=2)
    if curaddr.get(key)!=(tile):
        e("v_xor_b32 v%d, %d, %s"%(ar,tile*64,base)); curaddr[key]=tile
    off=(mat&1)*32768+ks*4096
    e("ds_read_b64_tr_b16 %s, v%d offset:%d"%(vr(slot,2),ar,off))
    e("ds_read_b64_tr_b16 %s, v%d offset:%d"%(vr(slot+2,2),ar,off+1024))
N=len(jobs)
e("s_waitcnt vmcnt(0)")
for j in range(R-1): issue(j)
for j in range(N):
    mat,tile,ks,acc,mode,post=jobs[j]
    if j+R-1<N: issue(j+R-1)
    e("s_waitcnt lgkmcnt(%d)"%(2*min(R-1,N-1-j)))
    slot=vr(RING+4*(j%R),4); ef=vr(E0+4*ks,4)
    a,b=(slot,ef) if mode=='A' else (ef,slot)
    e("v_mfma_f32_32x32x16_bf16 %s, %s, %s, %s"%(vr(acc,16),a,b,"0" if ks==0 else vr(acc,16)))
    if post:
        for p in post: e(p)
body="\n".join(L)
out=hdr+"""; @launch grid=(256,1,1) block=(1024,1,1) lds=131072
.amdgcn_target "amdgcn-amd-amdhsa--gfx950"
.text
.globl %s_kernel
.p2align 8
.type %s_kernel,@function
%s_kernel:
%s
L_done:
s_endpgm
.section .rodata,"a"
.p2align 6
.amdhsa_kernel %s_kernel
  .amdhsa_next_free_vgpr 128
  .amdhsa_next_free_sgpr 64
  .amdhsa_accum_offset 128
  .amdhsa_group_segment_fixed_size 0
  .amdhsa_kernarg_size 64
  .amdhsa_user_sgpr_count 2
  .amdhsa_user_sgpr_kernarg_segment_ptr 1
  .amdhsa_system_sgpr_workgroup_id_x 1
.end_amdhsa_kernel
"""%(NAME,NAME,NAME,body,NAME)
open("cdna_kernels/%s.s"%NAME,"w").write(out)
```

```python
import sys
L=[]
def e(s): L.append("    "+s)
NAME="standalone__attention_interact_autoint__recsys"
hdr=open("cdna_kernels/%s.s.ref"%NAME).read().split("; Override launch")[0]
E0=8; RING=40; ACC0=56; ACC1=72; P1=88; P2=104; T0=120
R=4
def vr(a,n): return "v[%d:%d]"%(a,a+n-1)

e("s_cmp_ge_u32 s2, 256")
e("s_cbranch_scc1 L_done")
e("s_load_dwordx8 s[4:11], s[0:1], 0")
e("s_load_dwordx4 s[12:15], s[0:1], 32")
e("v_and_b32 v1, 63, v0")
e("v_lshrrev_b32 v2, 6, v0")
e("s_waitcnt lgkmcnt(0)")
for i,(d,b,n) in enumerate([(16,4,27262976),(20,6,32768),(24,8,32768),(28,10,32768),(32,12,32768),(36,14,27262976)]):
    e("s_mov_b32 s%d, s%d"%(d,b)); e("s_and_b32 s%d, s%d, 0xffff"%(d+1,b+1)); e("s_mov_b32 s%d, %d"%(d+2,n)); e("s_mov_b32 s%d, 0x20000"%(d+3))
e("s_lshl_b32 s3, s2, 4")
e("v_add_u32 v2, s3, v2")
e("s_mov_b32 s40, 6656")
e("v_mul_lo_u32 v2, v2, s40")
e("v_and_b32 v3, 31, v1")
e("v_lshrrev_b32 v4, 5, v1")
e("v_lshl_add_u32 v2, v3, 8, v2")
e("v_lshl_add_u32 v5, v4, 4, v2")
e("v_lshlrev_b32 v6, 4, v0")
W=ACC0
for m,srd in enumerate([20,24,28,32]):
    for i in range(2):
        e("buffer_load_dwordx4 %s, v6, s[%d:%d], 0 offen offset:0"%(vr(W+8*m+4*i,4),srd,srd+3) if i==0 else
          "v_add_u32 v7, 16384, v6\n    buffer_load_dwordx4 %s, v7, s[%d:%d], 0 offen"%(vr(W+8*m+4*i,4),srd,srd+3))
for ks in range(8):
    e("buffer_load_dwordx4 %s, v5, s[16:19], 0 offen offset:%d"%(vr(E0+4*ks,4),ks*32))
e("v_lshrrev_b32 v6, 3, v0")
e("v_and_b32 v7, 3, v6")
e("v_bfe_u32 v%d, v0, 2, 1"%T0)
e("v_xor_b32 v7, v7, v%d"%T0)
e("v_lshlrev_b32 v7, 6, v7")
e("v_lshl_add_u32 v7, v6, 8, v7")
e("v_and_b32 v%d, 3, v0"%T0)
e("v_lshl_add_u32 v7, v%d, 4, v7"%T0)
e("v_xor_b32 v%d, 128, v7"%(T0+1))
e("v_lshrrev_b32 v6, 4, v0")
e("v_and_b32 v%d, 3, v6"%(T0+2))
e("v_bfe_u32 v%d, v0, 2, 2"%(T0+3))
e("v_xor_b32 v%d, v%d, v%d"%(T0+2,T0+2,T0+3))
e("v_lshlrev_b32 v%d, 6, v%d"%(T0+2,T0+2))
e("v_lshl_add_u32 v%d, v6, 8, v%d"%(T0+2,T0+2))
e("v_and_b32 v%d, 3, v0"%(T0+3))
e("v_lshl_add_u32 v%d, v%d, 4, v%d"%(T0+2,T0+3,T0+2))
e("v_add_u32 v%d, 0x18000, v%d"%(T0+2,T0+2))
e("v_add_u32 v%d, 0x10000, v7"%(T0+3))
e("v_add_u32 v%d, 0x10000, v%d"%(T0+4,T0+1))
e("s_waitcnt vmcnt(8)")
for m in range(2):
    e("ds_write_b128 v7, %s offset:%d"%(vr(W+8*m,4),m*32768))
    e("ds_write_b128 v%d, %s offset:%d"%(T0+1,vr(W+8*m+4,4),m*32768))
e("ds_write_b128 v%d, %s"%(T0+3,vr(W+16,4)))
e("ds_write_b128 v%d, %s"%(T0+4,vr(W+20,4)))
e("ds_write_b128 v%d, %s"%(T0+2,vr(W+24,4)))
e("ds_write_b128 v%d, %s offset:16384"%(T0+2,vr(W+28,4)))
e("v_bfe_u32 v6, v1, 2, 2")
e("v_lshl_add_u32 v7, v4, 3, v6")
e("v_lshlrev_b32 v7, 8, v7")
e("v_lshl_add_u32 v7, v6, 6, v7")
e("v_and_b32 v%d, 3, v1"%T0)
e("v_bfe_u32 v%d, v1, 4, 1"%(T0+1))
e("v_lshl_add_u32 v6, v%d, 5, v7"%(T0+1))
e("v_lshl_add_u32 v6, v%d, 3, v6"%T0)
e("v_lshl_add_u32 v7, v%d, 4, v7"%(T0+1))
e("v_and_b32 v%d, 1, v%d"%(T0+2,T0))
e("v_lshl_add_u32 v7, v%d, 5, v7"%(T0+2))
e("v_lshrrev_b32 v%d, 1, v%d"%(T0+2,T0))
e("v_lshl_add_u32 v7, v%d, 3, v7"%(T0+2))
e("v_add_u32 v7, 0x10000, v7")
e("v_cmp_lt_u32 s[42:43], 31, v1")
e("v_cmp_gt_u32 s[44:45], 26, v3")
e("v_mov_b32 v5, 0xff800000")
e("s_mov_b32 s41, 0x3e38aa3b")
e("s_waitcnt lgkmcnt(0)")
e("s_barrier")

jobs=[]
def pack(dst,src,n):
    o=[]
    for i in range(n): o.append("v_cvt_pk_bf16_f32 v%d, v%d, v%d"%(dst+i,src+2*i,src+2*i+1))
    return o
NOPS=["s_nop 7","s_nop 4"]
def softmax():
    a=ACC0; o=[]
    for s in range(4):
        tt=s>>1; hf=s&1
        o.append("v_mfma_f32_32x32x16_bf16 %s, %s, %s, %s"%(vr(a,16),vr(P2+8*tt+4*hf,4),vr(P1+8*tt+4*hf,4),"0" if s==0 else vr(a,16)))
    o+=NOPS
    t=T0;t2=T0+1
    o.append("v_cndmask_b32 v%d, v%d, v5, s[42:43]"%(a+12,a+12))
    o.append("v_cndmask_b32 v%d, v%d, v5, s[42:43]"%(a+13,a+13))
    o.append("v_max3_f32 v%d, v%d, v%d, v%d"%(t,a,a+1,a+2))
    for i in range(3,13,2): o.append("v_max3_f32 v%d, v%d, v%d, v%d"%(t,t,a+i,a+i+1))
    o.append("v_max_f32 v%d, v%d, v%d"%(t,t,a+13))
    o.append("v_mov_b32 v%d, v%d"%(t2,t)); o.append("s_nop 1")
    o.append("v_permlane32_swap_b32 v%d, v%d"%(t,t2))
    o.append("s_nop 1")
    o.append("v_max_f32 v%d, v%d, v%d"%(t,t,t2))
    o.append("v_mul_f32 v%d, s41, v%d"%(t,t))
    for i in range(14): o.append("v_fma_f32 v%d, v%d, s41, -v%d"%(a+i,a+i,t))
    for i in range(14): o.append("v_exp_f32 v%d, v%d"%(a+i,a+i))
    o.append("v_add_f32 v%d, v%d, v%d"%(t,a,a+1))
    for i in range(2,14): o.append("v_add_f32 v%d, v%d, v%d"%(t,t,a+i))
    o.append("v_mov_b32 v%d, v%d"%(t2,t)); o.append("s_nop 1")
    o.append("v_permlane32_swap_b32 v%d, v%d"%(t,t2))
    o.append("s_nop 1")
    o.append("v_add_f32 v%d, v%d, v%d"%(t,t,t2))
    o.append("v_rcp_f32 v%d, v%d"%(t,t)); o.append("s_nop 0")
    for i in range(14): o.append("v_mul_f32 v%d, v%d, v%d"%(a+i,a+i,t))
    o+=pack(P1,a,7)
    o.append("v_mov_b32 v%d, 0"%(P1+7))
    return o
def final(h):
    o=[]
    for t,a in enumerate((ACC0,ACC1)):
        for s in range(2):
            o.append("v_mfma_f32_32x32x16_bf16 %s, %s, %s, %s"%(vr(a,16),vr(P2+8*t+4*s,4),vr(P1+4*s,4),vr(a,16)))
    o+=NOPS
    o.append("s_mov_b64 s[46:47], exec")
    o.append("s_mov_b64 exec, s[44:45]")
    for t,a in enumerate((ACC0,ACC1)):
        for i in range(16): o.append("v_max_f32 v%d, 0, v%d"%(a+i,a+i))
        o+=pack(P2+8*t,a,8)
        o.append("v_lshl_add_u32 v%d, v4, 5, v2"%(T0+2))
        o.append("buffer_store_dwordx4 %s, v%d, s[36:39], 0 offen offset:%d"%(vr(P2+8*t,4),T0+2,128*h+64*t))
        o.append("buffer_store_dwordx4 %s, v%d, s[36:39], 0 offen offset:%d"%(vr(P2+8*t+4,4),T0+2,128*h+64*t+16))
    o.append("s_mov_b64 exec, s[46:47]")
    return o
for h in range(2):
    for mat,mode,post in ((0,'A',NOPS+pack(P1,ACC0,8)+pack(P1+8,ACC1,8)),
                          (1,'A',NOPS+pack(P2,ACC0,8)+pack(P2+8,ACC1,8)+["s_nop 1"]+softmax()),
                          (2,'B',NOPS+pack(P2,ACC0,8)+pack(P2+8,ACC1,8)),
                          (3,'A',["s_nop 1"]+final(h))):
        for t in range(2):
            for ks in range(8):
                jobs.append((mat,2*h+t,ks,(ACC0,ACC1)[t],mode,post if (t==1 and ks==7) else None))
curaddr={}
def issue(j):
    mat,tile,ks,acc,mode,post=jobs[j]
    slot=RING+4*(j%R)
    base="v6" if mat<2 else "v7"
    ar=T0+6+(1 if mat>=2 else 0)
    key=(mat>=2)
    if curaddr.get(key)!=(tile):
        e("v_xor_b32 v%d, %d, %s"%(ar,tile*64,base)); curaddr[key]=tile
    off=(mat&1)*32768+ks*4096
    e("ds_read_b64_tr_b16 %s, v%d offset:%d"%(vr(slot,2),ar,off))
    e("ds_read_b64_tr_b16 %s, v%d offset:%d"%(vr(slot+2,2),ar,off+1024))
import os
V=os.environ.get("VAR","")
if V=="nomfma":
    jobs=[j for j in jobs if j[5] and j[0]==3]
N=len(jobs)
e("s_waitcnt vmcnt(0)")
for j in range(min(R-1,N)): issue(j)
for j in range(N):
    mat,tile,ks,acc,mode,post=jobs[j]
    if j+R-1<N: issue(j+R-1)
    e("s_waitcnt lgkmcnt(%d)"%(2*min(R-1,N-1-j)))
    slot=vr(RING+4*(j%R),4); ef=vr(E0+4*ks,4)
    a,b=(slot,ef) if mode=='A' else (ef,slot)
    e("v_mfma_f32_32x32x16_bf16 %s, %s, %s, %s"%(vr(acc,16),a,b,"0" if ks==0 else vr(acc,16)))
    if post:
        for p in post: e(p)
body="\n".join(L)
out=hdr+"""; @launch grid=(256,1,1) block=(1024,1,1) lds=131072
.amdgcn_target "amdgcn-amd-amdhsa--gfx950"
.text
.globl %s_kernel
.p2align 8
.type %s_kernel,@function
%s_kernel:
%s
L_done:
s_endpgm
.section .rodata,"a"
.p2align 6
.amdhsa_kernel %s_kernel
  .amdhsa_next_free_vgpr 128
  .amdhsa_next_free_sgpr 64
  .amdhsa_accum_offset 128
  .amdhsa_group_segment_fixed_size 0
  .amdhsa_kernarg_size 64
  .amdhsa_user_sgpr_count 2
  .amdhsa_user_sgpr_kernarg_segment_ptr 1
  .amdhsa_system_sgpr_workgroup_id_x 1
.end_amdhsa_kernel
"""%(NAME,NAME,NAME,body,NAME)
open("cdna_kernels/%s%s.s"%(NAME,V),"w").write(out)
```

```python
import sys
L=[]
def e(s): L.append("    "+s)
NAME="standalone__attention_interact_autoint__recsys"
hdr=open("cdna_kernels/%s.s.ref"%NAME).read().split("; Override launch")[0]
E0=8; RING=40; ACC0=56; ACC1=72; P1=88; P2=104; T0=120
R=4
import os
CP1=int(os.environ.get('CP1','24')); CP2=int(os.environ.get('CP2','56')); STG=int(os.environ.get('STG','2')); EARLY=int(os.environ.get('EARLY','2'))
def vr(a,n): return "v[%d:%d]"%(a,a+n-1)

e("s_cmp_ge_u32 s2, 256")
e("s_cbranch_scc1 L_done")
e("s_load_dwordx8 s[4:11], s[0:1], 0")
e("s_load_dwordx4 s[12:15], s[0:1], 32")
DIAG=os.environ.get("VAR","")=="diag"
def stamp(i):
    if DIAG: e("s_memrealtime s[%d:%d]"%(64+2*i,65+2*i))
if DIAG: e("s_load_dwordx2 s[62:63], s[0:1], 56")
stamp(0)
e("v_and_b32 v1, 63, v0")
e("v_lshrrev_b32 v2, 6, v0")
e("s_waitcnt lgkmcnt(0)")
for i,(d,b,n) in enumerate([(16,4,27262976),(20,6,32768),(24,8,32768),(28,10,32768),(32,12,32768),(36,14,27262976)]):
    e("s_mov_b32 s%d, s%d"%(d,b)); e("s_and_b32 s%d, s%d, 0xffff"%(d+1,b+1)); e("s_mov_b32 s%d, %d"%(d+2,n)); e("s_mov_b32 s%d, 0x20000"%(d+3))
e("s_lshl_b32 s3, s2, 4")
e("v_add_u32 v2, s3, v2")
e("s_mov_b32 s40, 6656")
e("v_mul_lo_u32 v2, v2, s40")
e("v_and_b32 v3, 31, v1")
e("v_lshrrev_b32 v4, 5, v1")
e("v_lshl_add_u32 v2, v3, 8, v2")
e("v_lshl_add_u32 v5, v4, 4, v2")
e("v_lshlrev_b32 v6, 4, v0")
W=ACC0
for m,srd in enumerate([20,24,28,32]):
    for i in range(2):
        e("buffer_load_dwordx4 %s, v6, s[%d:%d], 0 offen offset:0"%(vr(W+8*m+4*i,4),srd,srd+3) if i==0 else
          "v_add_u32 v7, 16384, v6\n    buffer_load_dwordx4 %s, v7, s[%d:%d], 0 offen"%(vr(W+8*m+4*i,4),srd,srd+3))
e("v_readfirstlane_b32 s48, v0")
e("s_nop 3")
e("s_lshr_b32 s48, s48, 8")
e("s_cmp_ge_u32 s48, %d"%EARLY)
e("s_cbranch_scc1 L_late")
for ks in range(8):
    e("buffer_load_dwordx4 %s, v5, s[16:19], 0 offen offset:%d"%(vr(E0+4*ks,4),ks*32))
e("s_waitcnt vmcnt(8)")
e("s_branch L_j")
L.append("L_late:")
e("s_waitcnt vmcnt(0)")
L.append("L_j:")
e("v_mov_b32 v%d, v5"%(T0+5))
e("v_lshrrev_b32 v6, 3, v0")
e("v_and_b32 v7, 3, v6")
e("v_bfe_u32 v%d, v0, 2, 1"%T0)
e("v_xor_b32 v7, v7, v%d"%T0)
e("v_lshlrev_b32 v7, 6, v7")
e("v_lshl_add_u32 v7, v6, 8, v7")
e("v_and_b32 v%d, 3, v0"%T0)
e("v_lshl_add_u32 v7, v%d, 4, v7"%T0)
e("v_xor_b32 v%d, 128, v7"%(T0+1))
e("v_lshrrev_b32 v6, 4, v0")
e("v_and_b32 v%d, 3, v6"%(T0+2))
e("v_bfe_u32 v%d, v0, 2, 2"%(T0+3))
e("v_xor_b32 v%d, v%d, v%d"%(T0+2,T0+2,T0+3))
e("v_lshlrev_b32 v%d, 6, v%d"%(T0+2,T0+2))
e("v_lshl_add_u32 v%d, v6, 8, v%d"%(T0+2,T0+2))
e("v_and_b32 v%d, 3, v0"%(T0+3))
e("v_lshl_add_u32 v%d, v%d, 4, v%d"%(T0+2,T0+3,T0+2))
e("v_add_u32 v%d, 0x18000, v%d"%(T0+2,T0+2))
e("v_add_u32 v%d, 0x10000, v7"%(T0+3))
e("v_add_u32 v%d, 0x10000, v%d"%(T0+4,T0+1))
for m in range(2):
    e("ds_write_b128 v7, %s offset:%d"%(vr(W+8*m,4),m*32768))
    e("ds_write_b128 v%d, %s offset:%d"%(T0+1,vr(W+8*m+4,4),m*32768))
e("ds_write_b128 v%d, %s"%(T0+3,vr(W+16,4)))
e("ds_write_b128 v%d, %s"%(T0+4,vr(W+20,4)))
e("ds_write_b128 v%d, %s"%(T0+2,vr(W+24,4)))
e("ds_write_b128 v%d, %s offset:16384"%(T0+2,vr(W+28,4)))
e("v_bfe_u32 v6, v1, 2, 2")
e("v_lshl_add_u32 v7, v4, 3, v6")
e("v_lshlrev_b32 v7, 8, v7")
e("v_lshl_add_u32 v7, v6, 6, v7")
e("v_and_b32 v%d, 3, v1"%T0)
e("v_bfe_u32 v%d, v1, 4, 1"%(T0+1))
e("v_lshl_add_u32 v6, v%d, 5, v7"%(T0+1))
e("v_lshl_add_u32 v6, v%d, 3, v6"%T0)
e("v_lshl_add_u32 v7, v%d, 4, v7"%(T0+1))
e("v_and_b32 v%d, 1, v%d"%(T0+2,T0))
e("v_lshl_add_u32 v7, v%d, 5, v7"%(T0+2))
e("v_lshrrev_b32 v%d, 1, v%d"%(T0+2,T0))
e("v_lshl_add_u32 v7, v%d, 3, v7"%(T0+2))
e("v_add_u32 v7, 0x10000, v7")
e("v_cmp_lt_u32 s[42:43], 31, v1")
e("v_cmp_gt_u32 s[44:45], 26, v3")
e("v_mov_b32 v5, 0xff800000")
e("s_mov_b32 s41, 0x3e38aa3b")
e("s_waitcnt lgkmcnt(0)")
e("s_barrier")
stamp(1)
e("s_cmp_ge_u32 s48, %d"%EARLY)
e("s_cbranch_scc0 L_k")
for p in (range(2,4) if STG==4 else []):
    e("s_cmp_ge_u32 s48, %d"%p); e("s_cbranch_scc0 L_b%d"%p); e("s_barrier"); L.append("L_b%d:"%p)
for ks in range(8):
    e("buffer_load_dwordx4 %s, v125, s[16:19], 0 offen offset:%d"%(vr(E0+4*ks,4),ks*32))
L.append("L_k:")
for p in range(3):
    e("s_cmp_eq_u32 s48, %d"%p); e("s_cbranch_scc0 L_p%d"%p); e("s_setprio %d"%(3-p)); L.append("L_p%d:"%p)

jobs=[]
def pack(dst,src,n):
    o=[]
    for i in range(n): o.append("v_cvt_pk_bf16_f32 v%d, v%d, v%d"%(dst+i,src+2*i,src+2*i+1))
    return o
NOPS=["s_nop 7","s_nop 4"]
def softmax():
    a=ACC0; o=[]
    for s in range(4):
        tt=s>>1; hf=s&1
        o.append("v_mfma_f32_32x32x16_bf16 %s, %s, %s, %s"%(vr(a,16),vr(P2+8*tt+4*hf,4),vr(P1+8*tt+4*hf,4),"0" if s==0 else vr(a,16)))
    o+=NOPS
    t=T0;t2=T0+1
    o.append("v_cndmask_b32 v%d, v%d, v5, s[42:43]"%(a+12,a+12))
    o.append("v_cndmask_b32 v%d, v%d, v5, s[42:43]"%(a+13,a+13))
    o.append("v_max3_f32 v%d, v%d, v%d, v%d"%(t,a,a+1,a+2))
    for i in range(3,13,2): o.append("v_max3_f32 v%d, v%d, v%d, v%d"%(t,t,a+i,a+i+1))
    o.append("v_max_f32 v%d, v%d, v%d"%(t,t,a+13))
    o.append("v_mov_b32 v%d, v%d"%(t2,t)); o.append("s_nop 1")
    o.append("v_permlane32_swap_b32 v%d, v%d"%(t,t2))
    o.append("s_nop 1")
    o.append("v_max_f32 v%d, v%d, v%d"%(t,t,t2))
    o.append("v_mul_f32 v%d, s41, v%d"%(t,t))
    for i in range(14): o.append("v_fma_f32 v%d, v%d, s41, -v%d"%(a+i,a+i,t))
    for i in range(14): o.append("v_exp_f32 v%d, v%d"%(a+i,a+i))
    o.append("v_add_f32 v%d, v%d, v%d"%(t,a,a+1))
    for i in range(2,14): o.append("v_add_f32 v%d, v%d, v%d"%(t,t,a+i))
    o.append("v_mov_b32 v%d, v%d"%(t2,t)); o.append("s_nop 1")
    o.append("v_permlane32_swap_b32 v%d, v%d"%(t,t2))
    o.append("s_nop 1")
    o.append("v_add_f32 v%d, v%d, v%d"%(t,t,t2))
    o.append("v_rcp_f32 v%d, v%d"%(t,t)); o.append("s_nop 0")
    for i in range(14): o.append("v_mul_f32 v%d, v%d, v%d"%(a+i,a+i,t))
    o+=pack(P1,a,7)
    o.append("v_mov_b32 v%d, 0"%(P1+7))
    return o
def final(h):
    o=[]
    for t,a in enumerate((ACC0,ACC1)):
        for s in range(2):
            o.append("v_mfma_f32_32x32x16_bf16 %s, %s, %s, %s"%(vr(a,16),vr(P2+8*t+4*s,4),vr(P1+4*s,4),vr(a,16)))
    o+=NOPS
    o.append("s_mov_b64 s[46:47], exec")
    o.append("s_mov_b64 exec, s[44:45]")
    for t,a in enumerate((ACC0,ACC1)):
        for i in range(16): o.append("v_max_f32 v%d, 0, v%d"%(a+i,a+i))
        o+=pack(P2+8*t,a,8)
        o.append("v_lshl_add_u32 v%d, v4, 5, v2"%(T0+2))
        o.append("buffer_store_dwordx4 %s, v%d, s[36:39], 0 offen offset:%d"%(vr(P2+8*t,4),T0+2,128*h+64*t))
        o.append("buffer_store_dwordx4 %s, v%d, s[36:39], 0 offen offset:%d"%(vr(P2+8*t+4,4),T0+2,128*h+64*t+16))
    o.append("s_mov_b64 exec, s[46:47]")
    return o
for h in range(2):
    for mat,mode,post in ((0,'A',NOPS+pack(P1,ACC0,8)+pack(P1+8,ACC1,8)),
                          (1,'A',NOPS+pack(P2,ACC0,8)+pack(P2+8,ACC1,8)+["s_nop 1"]+softmax()),
                          (2,'B',NOPS+pack(P2,ACC0,8)+pack(P2+8,ACC1,8)),
                          (3,'A',["s_nop 1"]+final(h))):
        for t in range(2):
            for ks in range(8):
                jobs.append((mat,2*h+t,ks,(ACC0,ACC1)[t],mode,post if (t==1 and ks==7) else None))
curaddr={}
def issue(j):
    mat,tile,ks,acc,mode,post=jobs[j]
    slot=RING+4*(j%R)
    base="v6" if mat<2 else "v7"
    ar=T0+6+(1 if mat>=2 else 0)
    key=(mat>=2)
    if curaddr.get(key)!=(tile):
        e("v_xor_b32 v%d, %d, %s"%(ar,tile*64,base)); curaddr[key]=tile
    off=(mat&1)*32768+ks*4096
    e("ds_read_b64_tr_b16 %s, v%d offset:%d"%(vr(slot,2),ar,off))
    e("ds_read_b64_tr_b16 %s, v%d offset:%d"%(vr(slot+2,2),ar,off+1024))
import os
V=os.environ.get("VAR","")
if V=="nomfma":
    jobs=[j for j in jobs if j[5] and j[0]==3]
N=len(jobs)
e("s_waitcnt vmcnt(0)")
stamp(2)
for j in range(min(R-1,N)): issue(j)
for j in range(N):
    mat,tile,ks,acc,mode,post=jobs[j]
    if j+R-1<N: issue(j+R-1)
    e("s_waitcnt lgkmcnt(%d)"%(2*min(R-1,N-1-j)))
    slot=vr(RING+4*(j%R),4); ef=vr(E0+4*ks,4)
    a,b=(slot,ef) if mode=='A' else (ef,slot)
    e("v_mfma_f32_32x32x16_bf16 %s, %s, %s, %s"%(vr(acc,16),a,b,"0" if ks==0 else vr(acc,16)))
    if post:
        for p in post: e(p)
    for c,pos in ((1,CP1),(2,CP2)):
        if j==pos and STG==4:
            e("s_cmp_le_u32 s48, %d"%(3-c)); e("s_cbranch_scc0 L_c%d"%c); e("s_barrier"); L.append("L_c%d:"%c)
if DIAG:
    stamp(3)
    e("s_waitcnt vmcnt(0)")
    stamp(4)
    e("s_waitcnt lgkmcnt(0)")
    e("s_mov_b32 s76, s62"); e("s_and_b32 s77, s63, 0xffff"); e("s_mov_b32 s78, 1048576"); e("s_mov_b32 s79, 0x20000")
    e("v_lshrrev_b32 v10, 6, v0"); e("s_lshl_b32 s3, s2, 4"); e("v_add_u32 v10, s3, v10"); e("v_mul_u32_u24 v10, 64, v10")
    for i in range(10): e("v_mov_b32 v%d, s%d"%(12+i,64+i))
    e("s_mov_b64 exec, 1")
    e("buffer_store_dwordx4 v[12:15], v10, s[76:79], 0 offen")
    e("buffer_store_dwordx4 v[16:19], v10, s[76:79], 0 offen offset:16")
    e("buffer_store_dwordx2 v[20:21], v10, s[76:79], 0 offen offset:32")
NT=os.environ.get("NT","")
if "l" in NT: L=[x+" nt" if ("buffer_load" in x and "s[16:19]" in x) else x for x in L]
if "s" in NT: L=[x+" nt" if ("buffer_store" in x and "s[36:39]" in x) else x for x in L]
if V=="noload": L=[x for x in L if not ("buffer_load" in x and "s[16:19]" in x)]
if V=="nostore": L=[x for x in L if "buffer_store" not in x]
if V=="nomem": L=[x for x in L if "buffer_store" not in x and not ("buffer_load" in x and "s[16:19]" in x)]
body="\n".join(L)
out=hdr+"""; @launch grid=(256,1,1) block=(1024,1,1) lds=131072
.amdgcn_target "amdgcn-amd-amdhsa--gfx950"
.text
.globl %s_kernel
.p2align 8
.type %s_kernel,@function
%s_kernel:
%s
L_done:
s_endpgm
.section .rodata,"a"
.p2align 6
.amdhsa_kernel %s_kernel
  .amdhsa_next_free_vgpr 128
  .amdhsa_next_free_sgpr 96
  .amdhsa_accum_offset 128
  .amdhsa_group_segment_fixed_size 0
  .amdhsa_kernarg_size 64
  .amdhsa_user_sgpr_count 2
  .amdhsa_user_sgpr_kernarg_segment_ptr 1
  .amdhsa_system_sgpr_workgroup_id_x 1
.end_amdhsa_kernel
"""%(NAME,NAME,NAME,body,NAME)
open("cdna_kernels/%s%s.s"%(NAME,V),"w").write(out)
```

```python
import sys
L=[]
def e(s): L.append("    "+s)
NAME="standalone__attention_interact_autoint__recsys"
hdr=open("cdna_kernels/%s.s.ref"%NAME).read().split("; Override launch")[0]
E0=8; RING=40; ACC0=56; ACC1=72; P1=88; P2=104; T0=120
R=4
import os
CP1=int(os.environ.get('CP1','24')); CP2=int(os.environ.get('CP2','56')); STG=int(os.environ.get('STG','2')); EARLY=int(os.environ.get('EARLY','2'))
def vr(a,n): return "v[%d:%d]"%(a,a+n-1)

e("s_cmp_ge_u32 s2, 256")
e("s_cbranch_scc1 L_done")
e("s_load_dwordx8 s[4:11], s[0:1], 0")
e("s_load_dwordx4 s[12:15], s[0:1], 32")
DIAG=os.environ.get("VAR","")=="diag"
def stamp(i):
    if DIAG: e("s_memrealtime s[%d:%d]"%(64+2*i,65+2*i))
if DIAG: e("s_load_dwordx2 s[62:63], s[0:1], 56")
stamp(0)
e("v_and_b32 v1, 63, v0")
e("v_lshrrev_b32 v2, 6, v0")
e("s_waitcnt lgkmcnt(0)")
for i,(d,b,n) in enumerate([(16,4,27262976),(20,6,32768),(24,8,32768),(28,10,32768),(32,12,32768),(36,14,27262976)]):
    e("s_mov_b32 s%d, s%d"%(d,b)); e("s_and_b32 s%d, s%d, 0xffff"%(d+1,b+1)); e("s_mov_b32 s%d, %d"%(d+2,n)); e("s_mov_b32 s%d, 0x20000"%(d+3))
e("s_lshl_b32 s3, s2, 4")
e("v_add_u32 v2, s3, v2")
e("s_mov_b32 s40, 6656")
e("v_mul_lo_u32 v2, v2, s40")
e("v_and_b32 v3, 31, v1")
e("v_lshrrev_b32 v4, 5, v1")
e("v_lshl_add_u32 v2, v3, 8, v2")
e("v_lshl_add_u32 v5, v4, 4, v2")
e("v_lshlrev_b32 v6, 4, v0")
W=ACC0
for m,srd in enumerate([20,24,28,32]):
    for i in range(2):
        e("buffer_load_dwordx4 %s, v6, s[%d:%d], 0 offen offset:0"%(vr(W+8*m+4*i,4),srd,srd+3) if i==0 else
          "v_add_u32 v7, 16384, v6\n    buffer_load_dwordx4 %s, v7, s[%d:%d], 0 offen"%(vr(W+8*m+4*i,4),srd,srd+3))
e("v_readfirstlane_b32 s48, v0")
e("s_nop 3")
e("s_lshr_b32 s48, s48, 8")
e("s_cmp_ge_u32 s48, %d"%EARLY)
e("s_cbranch_scc1 L_late")
for ks in range(8):
    e("buffer_load_dwordx4 %s, v5, s[16:19], 0 offen offset:%d"%(vr(E0+4*ks,4),ks*32))
e("s_waitcnt vmcnt(8)")
e("s_branch L_j")
L.append("L_late:")
e("s_waitcnt vmcnt(0)")
L.append("L_j:")
e("v_mov_b32 v%d, v5"%(T0+5))
e("v_lshrrev_b32 v6, 3, v0")
e("v_and_b32 v7, 3, v6")
e("v_bfe_u32 v%d, v0, 2, 1"%T0)
e("v_xor_b32 v7, v7, v%d"%T0)
e("v_lshlrev_b32 v7, 6, v7")
e("v_lshl_add_u32 v7, v6, 8, v7")
e("v_and_b32 v%d, 3, v0"%T0)
e("v_lshl_add_u32 v7, v%d, 4, v7"%T0)
e("v_xor_b32 v%d, 128, v7"%(T0+1))
e("v_lshrrev_b32 v6, 4, v0")
e("v_and_b32 v%d, 3, v6"%(T0+2))
e("v_bfe_u32 v%d, v0, 2, 2"%(T0+3))
e("v_xor_b32 v%d, v%d, v%d"%(T0+2,T0+2,T0+3))
e("v_lshlrev_b32 v%d, 6, v%d"%(T0+2,T0+2))
e("v_lshl_add_u32 v%d, v6, 8, v%d"%(T0+2,T0+2))
e("v_and_b32 v%d, 3, v0"%(T0+3))
e("v_lshl_add_u32 v%d, v%d, 4, v%d"%(T0+2,T0+3,T0+2))
e("v_add_u32 v%d, 0x18000, v%d"%(T0+2,T0+2))
e("v_add_u32 v%d, 0x10000, v7"%(T0+3))
e("v_add_u32 v%d, 0x10000, v%d"%(T0+4,T0+1))
for m in range(2):
    e("ds_write_b128 v7, %s offset:%d"%(vr(W+8*m,4),m*32768))
    e("ds_write_b128 v%d, %s offset:%d"%(T0+1,vr(W+8*m+4,4),m*32768))
e("ds_write_b128 v%d, %s"%(T0+3,vr(W+16,4)))
e("ds_write_b128 v%d, %s"%(T0+4,vr(W+20,4)))
e("ds_write_b128 v%d, %s"%(T0+2,vr(W+24,4)))
e("ds_write_b128 v%d, %s offset:16384"%(T0+2,vr(W+28,4)))
e("v_bfe_u32 v6, v1, 2, 2")
e("v_lshl_add_u32 v7, v4, 3, v6")
e("v_lshlrev_b32 v7, 8, v7")
e("v_lshl_add_u32 v7, v6, 6, v7")
e("v_and_b32 v%d, 3, v1"%T0)
e("v_bfe_u32 v%d, v1, 4, 1"%(T0+1))
e("v_lshl_add_u32 v6, v%d, 5, v7"%(T0+1))
e("v_lshl_add_u32 v6, v%d, 3, v6"%T0)
e("v_lshl_add_u32 v7, v%d, 4, v7"%(T0+1))
e("v_and_b32 v%d, 1, v%d"%(T0+2,T0))
e("v_lshl_add_u32 v7, v%d, 5, v7"%(T0+2))
e("v_lshrrev_b32 v%d, 1, v%d"%(T0+2,T0))
e("v_lshl_add_u32 v7, v%d, 3, v7"%(T0+2))
e("v_add_u32 v7, 0x10000, v7")
e("v_cmp_lt_u32 s[42:43], 31, v1")
e("v_cmp_gt_u32 s[44:45], 26, v3")
e("v_cmp_gt_u32 s[50:51], 16, v3")
e("v_cmp_le_u32 s[52:53], 16, v3")
e("v_lshlrev_b32 v3, 8, v3")
e("v_sub_u32 v3, v2, v3")
e("v_lshrrev_b32 v%d, 3, v1"%T0)
e("v_lshl_add_u32 v3, v%d, 8, v3"%T0)
e("v_and_b32 v%d, 7, v1"%T0)
e("v_lshl_add_u32 v3, v%d, 4, v3"%T0)
e("v_readfirstlane_b32 s49, v0")
e("s_nop 3")
e("s_lshr_b32 s49, s49, 6")
e("s_lshl_b32 s49, s49, 11")
e("s_add_u32 s49, s49, 131072")
e("s_mov_b32 s54, 4096")
e("v_mov_b32 v5, 0xff800000")
e("s_mov_b32 s41, 0x3e38aa3b")
e("s_waitcnt lgkmcnt(0)")
e("s_barrier")
stamp(1)
e("s_cmp_ge_u32 s48, %d"%EARLY)
e("s_cbranch_scc0 L_k")
for p in (range(2,4) if STG==4 else []):
    e("s_cmp_ge_u32 s48, %d"%p); e("s_cbranch_scc0 L_b%d"%p); e("s_barrier"); L.append("L_b%d:"%p)
for ks in range(8):
    e("buffer_load_dwordx4 %s, v125, s[16:19], 0 offen offset:%d"%(vr(E0+4*ks,4),ks*32))
L.append("L_k:")
for p in range(3):
    e("s_cmp_eq_u32 s48, %d"%p); e("s_cbranch_scc0 L_p%d"%p); e("s_setprio %d"%(3-p)); L.append("L_p%d:"%p)

jobs=[]
def pack(dst,src,n):
    o=[]
    for i in range(n): o.append("v_cvt_pk_bf16_f32 v%d, v%d, v%d"%(dst+i,src+2*i,src+2*i+1))
    return o
NOPS=["s_nop 7","s_nop 4"]
def softmax():
    a=ACC0; o=[]
    for s in range(4):
        tt=s>>1; hf=s&1
        o.append("v_mfma_f32_32x32x16_bf16 %s, %s, %s, %s"%(vr(a,16),vr(P2+8*tt+4*hf,4),vr(P1+8*tt+4*hf,4),"0" if s==0 else vr(a,16)))
    o+=NOPS
    t=T0;t2=T0+1
    o.append("v_cndmask_b32 v%d, v%d, v5, s[42:43]"%(a+12,a+12))
    o.append("v_cndmask_b32 v%d, v%d, v5, s[42:43]"%(a+13,a+13))
    o.append("v_max3_f32 v%d, v%d, v%d, v%d"%(t,a,a+1,a+2))
    for i in range(3,13,2): o.append("v_max3_f32 v%d, v%d, v%d, v%d"%(t,t,a+i,a+i+1))
    o.append("v_max_f32 v%d, v%d, v%d"%(t,t,a+13))
    o.append("v_mov_b32 v%d, v%d"%(t2,t)); o.append("s_nop 1")
    o.append("v_permlane32_swap_b32 v%d, v%d"%(t,t2))
    o.append("s_nop 1")
    o.append("v_max_f32 v%d, v%d, v%d"%(t,t,t2))
    o.append("v_mul_f32 v%d, s41, v%d"%(t,t))
    for i in range(14): o.append("v_fma_f32 v%d, v%d, s41, -v%d"%(a+i,a+i,t))
    for i in range(14): o.append("v_exp_f32 v%d, v%d"%(a+i,a+i))
    o.append("v_add_f32 v%d, v%d, v%d"%(t,a,a+1))
    for i in range(2,14): o.append("v_add_f32 v%d, v%d, v%d"%(t,t,a+i))
    o.append("v_mov_b32 v%d, v%d"%(t2,t)); o.append("s_nop 1")
    o.append("v_permlane32_swap_b32 v%d, v%d"%(t,t2))
    o.append("s_nop 1")
    o.append("v_add_f32 v%d, v%d, v%d"%(t,t,t2))
    o.append("v_rcp_f32 v%d, v%d"%(t,t)); o.append("s_nop 0")
    for i in range(14): o.append("v_mul_f32 v%d, v%d, v%d"%(a+i,a+i,t))
    o+=pack(P1,a,7)
    o.append("v_mov_b32 v%d, 0"%(P1+7))
    return o
def final(h):
    o=[]
    for t,a in enumerate((ACC0,ACC1)):
        for s in range(2):
            o.append("v_mfma_f32_32x32x16_bf16 %s, %s, %s, %s"%(vr(a,16),vr(P2+8*t+4*s,4),vr(P1+4*s,4),vr(a,16)))
    o+=NOPS
    for t,a in enumerate((ACC0,ACC1)):
        for i in range(16): o.append("v_max_f32 v%d, 0, v%d"%(a+i,a+i))
        o+=pack(P2+8*t,a,8)
    o.append("v_and_b32 v%d, 7, v1"%(T0+2))
    o.append("v_lshlrev_b32 v%d, 1, v4"%(T0+3))
    o.append("v_xor_b32 v%d, v%d, v%d"%(T0+2,T0+2,T0+3))
    o.append("v_and_b32 v%d, 15, v1"%(T0+3))
    o.append("v_lshlrev_b32 v%d, 7, v%d"%(T0+3,T0+3))
    o.append("v_lshl_add_u32 v%d, v%d, 4, v%d"%(T0,T0+2,T0+3))
    o.append("v_add_u32 v%d, s49, v%d"%(T0,T0))
    o.append("v_lshrrev_b32 v%d, 3, v1"%(T0+2))
    o.append("v_and_b32 v%d, 7, v1"%(T0+3))
    o.append("v_xor_b32 v%d, v%d, v%d"%(T0+3,T0+3,T0+2))
    o.append("v_lshlrev_b32 v%d, 4, v%d"%(T0+3,T0+3))
    o.append("v_lshl_add_u32 v%d, v%d, 7, v%d"%(T0+1,T0+2,T0+3))
    o.append("v_add_u32 v%d, s49, v%d"%(T0+1,T0+1))
    for k,(t,u) in enumerate(((0,0),(0,1),(1,0),(1,1))):
        o.append("v_xor_b32 v%d, %d, v%d"%(T0+2+k,(4*t+u)<<4,T0))
    for rho in range(2):
        o.append("s_mov_b64 exec, s[%d:%d]"%((50,51) if rho==0 else (52,53)))
        for k,(t,u) in enumerate(((0,0),(0,1),(1,0),(1,1))):
            o.append("ds_write_b128 v%d, %s"%(T0+2+k,vr(P2+8*t+4*u,4)))
        o.append("s_mov_b64 exec, -1")
        o.append("s_waitcnt lgkmcnt(0)")
        o.append("ds_read_b128 %s, v%d"%(vr(ACC0+8*rho,4),T0+1))
        o.append("ds_read_b128 %s, v%d offset:1024"%(vr(ACC0+8*rho+4,4),T0+1))
        o.append("s_waitcnt lgkmcnt(0)")
        o.append("buffer_store_dwordx4 %s, v3, s[36:39], %s offen offset:%d"%(vr(ACC0+8*rho,4),("0","s54")[rho],128*h))
        if rho==1: o.append("s_mov_b64 exec, 0xffff")
        o.append("buffer_store_dwordx4 %s, v3, s[36:39], %s offen offset:%d"%(vr(ACC0+8*rho+4,4),("0","s54")[rho],128*h+2048))
    o.append("s_mov_b64 exec, -1")
    return o
for h in range(2):
    for mat,mode,post in ((0,'A',NOPS+pack(P1,ACC0,8)+pack(P1+8,ACC1,8)),
                          (1,'A',NOPS+pack(P2,ACC0,8)+pack(P2+8,ACC1,8)+["s_nop 1"]+softmax()),
                          (2,'B',NOPS+pack(P2,ACC0,8)+pack(P2+8,ACC1,8)),
                          (3,'A',["s_nop 1"]+final(h))):
        for t in range(2):
            for ks in range(8):
                jobs.append((mat,2*h+t,ks,(ACC0,ACC1)[t],mode,post if (t==1 and ks==7) else None))
curaddr={}
def issue(j):
    mat,tile,ks,acc,mode,post=jobs[j]
    slot=RING+4*(j%R)
    base="v6" if mat<2 else "v7"
    ar=T0+6+(1 if mat>=2 else 0)
    key=(mat>=2)
    if curaddr.get(key)!=(tile):
        e("v_xor_b32 v%d, %d, %s"%(ar,tile*64,base)); curaddr[key]=tile
    off=(mat&1)*32768+ks*4096
    e("ds_read_b64_tr_b16 %s, v%d offset:%d"%(vr(slot,2),ar,off))
    e("ds_read_b64_tr_b16 %s, v%d offset:%d"%(vr(slot+2,2),ar,off+1024))
import os
V=os.environ.get("VAR","")
if V=="nomfma":
    jobs=[j for j in jobs if j[5] and j[0]==3]
N=len(jobs)
e("s_waitcnt vmcnt(0)")
stamp(2)
for j in range(min(R-1,N)): issue(j)
for j in range(N):
    mat,tile,ks,acc,mode,post=jobs[j]
    if j+R-1<N: issue(j+R-1)
    e("s_waitcnt lgkmcnt(%d)"%(2*min(R-1,N-1-j)))
    slot=vr(RING+4*(j%R),4); ef=vr(E0+4*ks,4)
    a,b=(slot,ef) if mode=='A' else (ef,slot)
    e("v_mfma_f32_32x32x16_bf16 %s, %s, %s, %s"%(vr(acc,16),a,b,"0" if ks==0 else vr(acc,16)))
    if post:
        for p in post: e(p)
    for c,pos in ((1,CP1),(2,CP2)):
        if j==pos and STG==4:
            e("s_cmp_le_u32 s48, %d"%(3-c)); e("s_cbranch_scc0 L_c%d"%c); e("s_barrier"); L.append("L_c%d:"%c)
if DIAG:
    stamp(3)
    e("s_waitcnt vmcnt(0)")
    stamp(4)
    e("s_waitcnt lgkmcnt(0)")
    e("s_mov_b32 s76, s62"); e("s_and_b32 s77, s63, 0xffff"); e("s_mov_b32 s78, 1048576"); e("s_mov_b32 s79, 0x20000")
    e("v_lshrrev_b32 v10, 6, v0"); e("s_lshl_b32 s3, s2, 4"); e("v_add_u32 v10, s3, v10"); e("v_mul_u32_u24 v10, 64, v10")
    for i in range(10): e("v_mov_b32 v%d, s%d"%(12+i,64+i))
    e("s_mov_b64 exec, 1")
    e("buffer_store_dwordx4 v[12:15], v10, s[76:79], 0 offen")
    e("buffer_store_dwordx4 v[16:19], v10, s[76:79], 0 offen offset:16")
    e("buffer_store_dwordx2 v[20:21], v10, s[76:79], 0 offen offset:32")
NT=os.environ.get("NT","")
if "l" in NT: L=[x+" nt" if ("buffer_load" in x and "s[16:19]" in x) else x for x in L]
if "s" in NT: L=[x+" nt" if ("buffer_store" in x and "s[36:39]" in x) else x for x in L]
SF=os.environ.get("SF","")
if SF: L=[x+" "+SF if ("buffer_store" in x and "s[36:39]" in x) else x for x in L]
if V=="noload": L=[x for x in L if not ("buffer_load" in x and "s[16:19]" in x)]
if V=="nostore": L=[x for x in L if "buffer_store" not in x]
if V=="nomem": L=[x for x in L if "buffer_store" not in x and not ("buffer_load" in x and "s[16:19]" in x)]
body="\n".join(L)
out=hdr+"""; @launch grid=(256,1,1) block=(1024,1,1) lds=163840
.amdgcn_target "amdgcn-amd-amdhsa--gfx950"
.text
.globl %s_kernel
.p2align 8
.type %s_kernel,@function
%s_kernel:
%s
L_done:
s_endpgm
.section .rodata,"a"
.p2align 6
.amdhsa_kernel %s_kernel
  .amdhsa_next_free_vgpr 128
  .amdhsa_next_free_sgpr 96
  .amdhsa_accum_offset 128
  .amdhsa_group_segment_fixed_size 0
  .amdhsa_kernarg_size 64
  .amdhsa_user_sgpr_count 2
  .amdhsa_user_sgpr_kernarg_segment_ptr 1
  .amdhsa_system_sgpr_workgroup_id_x 1
.end_amdhsa_kernel
"""%(NAME,NAME,NAME,body,NAME)
open("cdna_kernels/%s%s.s"%(NAME,V),"w").write(out)
```

```python
import sys
L=[]
def e(s): L.append("    "+s)
NAME="standalone__attention_interact_autoint__recsys"
hdr=open("cdna_kernels/%s.s.ref"%NAME).read().split("; Override launch")[0]
E0=8; RING=40; ACC0=56; ACC1=72; P1=88; P2=104; T0=120
R=4
import os
PR=[int(c) for c in os.environ.get('PR','321')]
import os
CP1=int(os.environ.get('CP1','24')); CP2=int(os.environ.get('CP2','56')); STG=int(os.environ.get('STG','2')); EARLY=int(os.environ.get('EARLY','2'))
def vr(a,n): return "v[%d:%d]"%(a,a+n-1)

e("s_cmp_ge_u32 s2, 256")
e("s_cbranch_scc1 L_done")
e("s_load_dwordx8 s[4:11], s[0:1], 0")
e("s_load_dwordx4 s[12:15], s[0:1], 32")
DIAG=os.environ.get("VAR","")=="diag"
def stamp(i):
    if DIAG: e("s_memrealtime s[%d:%d]"%(64+2*i,65+2*i))
if DIAG: e("s_load_dwordx2 s[62:63], s[0:1], 56")
stamp(0)
e("v_and_b32 v1, 63, v0")
e("v_lshrrev_b32 v2, 6, v0")
e("s_waitcnt lgkmcnt(0)")
for i,(d,b,n) in enumerate([(16,4,27262976),(20,6,32768),(24,8,32768),(28,10,32768),(32,12,32768),(36,14,27262976)]):
    e("s_mov_b32 s%d, s%d"%(d,b)); e("s_and_b32 s%d, s%d, 0xffff"%(d+1,b+1)); e("s_mov_b32 s%d, %d"%(d+2,n)); e("s_mov_b32 s%d, 0x20000"%(d+3))
e("s_lshl_b32 s3, s2, 4")
e("v_add_u32 v2, s3, v2")
e("s_mov_b32 s40, 6656")
e("v_mul_lo_u32 v2, v2, s40")
e("v_and_b32 v3, 31, v1")
e("v_lshrrev_b32 v4, 5, v1")
e("v_lshl_add_u32 v2, v3, 8, v2")
e("v_lshl_add_u32 v5, v4, 4, v2")
e("v_lshlrev_b32 v6, 4, v0")
W=ACC0
for m,srd in enumerate([20,24,28,32]):
    for i in range(2):
        e("buffer_load_dwordx4 %s, v6, s[%d:%d], 0 offen offset:0"%(vr(W+8*m+4*i,4),srd,srd+3) if i==0 else
          "v_add_u32 v7, 16384, v6\n    buffer_load_dwordx4 %s, v7, s[%d:%d], 0 offen"%(vr(W+8*m+4*i,4),srd,srd+3))
e("v_readfirstlane_b32 s48, v0")
e("s_nop 3")
e("s_lshr_b32 s48, s48, 8")
e("s_cmp_ge_u32 s48, %d"%EARLY)
e("s_cbranch_scc1 L_late")
for ks in range(8):
    e("buffer_load_dwordx4 %s, v5, s[16:19], 0 offen offset:%d"%(vr(E0+4*ks,4),ks*32))
e("s_waitcnt vmcnt(8)")
e("s_branch L_j")
L.append("L_late:")
e("s_waitcnt vmcnt(0)")
L.append("L_j:")
e("v_mov_b32 v%d, v5"%(T0+5))
e("v_lshrrev_b32 v6, 3, v0")
e("v_and_b32 v7, 3, v6")
e("v_bfe_u32 v%d, v0, 2, 1"%T0)
e("v_xor_b32 v7, v7, v%d"%T0)
e("v_lshlrev_b32 v7, 6, v7")
e("v_lshl_add_u32 v7, v6, 8, v7")
e("v_and_b32 v%d, 3, v0"%T0)
e("v_lshl_add_u32 v7, v%d, 4, v7"%T0)
e("v_xor_b32 v%d, 128, v7"%(T0+1))
e("v_lshrrev_b32 v6, 4, v0")
e("v_and_b32 v%d, 3, v6"%(T0+2))
e("v_bfe_u32 v%d, v0, 2, 2"%(T0+3))
e("v_xor_b32 v%d, v%d, v%d"%(T0+2,T0+2,T0+3))
e("v_lshlrev_b32 v%d, 6, v%d"%(T0+2,T0+2))
e("v_lshl_add_u32 v%d, v6, 8, v%d"%(T0+2,T0+2))
e("v_and_b32 v%d, 3, v0"%(T0+3))
e("v_lshl_add_u32 v%d, v%d, 4, v%d"%(T0+2,T0+3,T0+2))
e("v_add_u32 v%d, 0x18000, v%d"%(T0+2,T0+2))
e("v_add_u32 v%d, 0x10000, v7"%(T0+3))
e("v_add_u32 v%d, 0x10000, v%d"%(T0+4,T0+1))
for m in range(2):
    e("ds_write_b128 v7, %s offset:%d"%(vr(W+8*m,4),m*32768))
    e("ds_write_b128 v%d, %s offset:%d"%(T0+1,vr(W+8*m+4,4),m*32768))
e("ds_write_b128 v%d, %s"%(T0+3,vr(W+16,4)))
e("ds_write_b128 v%d, %s"%(T0+4,vr(W+20,4)))
e("ds_write_b128 v%d, %s"%(T0+2,vr(W+24,4)))
e("ds_write_b128 v%d, %s offset:16384"%(T0+2,vr(W+28,4)))
e("v_bfe_u32 v6, v1, 2, 2")
e("v_lshl_add_u32 v7, v4, 3, v6")
e("v_lshlrev_b32 v7, 8, v7")
e("v_lshl_add_u32 v7, v6, 6, v7")
e("v_and_b32 v%d, 3, v1"%T0)
e("v_bfe_u32 v%d, v1, 4, 1"%(T0+1))
e("v_lshl_add_u32 v6, v%d, 5, v7"%(T0+1))
e("v_lshl_add_u32 v6, v%d, 3, v6"%T0)
e("v_lshl_add_u32 v7, v%d, 4, v7"%(T0+1))
e("v_and_b32 v%d, 1, v%d"%(T0+2,T0))
e("v_lshl_add_u32 v7, v%d, 5, v7"%(T0+2))
e("v_lshrrev_b32 v%d, 1, v%d"%(T0+2,T0))
e("v_lshl_add_u32 v7, v%d, 3, v7"%(T0+2))
e("v_add_u32 v7, 0x10000, v7")
e("v_cmp_lt_u32 s[42:43], 31, v1")
e("v_cmp_gt_u32 s[44:45], 26, v3")
e("v_cmp_gt_u32 s[50:51], 16, v3")
e("v_cmp_le_u32 s[52:53], 16, v3")
e("v_lshlrev_b32 v3, 8, v3")
e("v_sub_u32 v3, v2, v3")
e("v_lshrrev_b32 v%d, 3, v1"%T0)
e("v_lshl_add_u32 v3, v%d, 8, v3"%T0)
e("v_and_b32 v%d, 7, v1"%T0)
e("v_lshl_add_u32 v3, v%d, 4, v3"%T0)
e("v_readfirstlane_b32 s49, v0")
e("s_nop 3")
e("s_lshr_b32 s49, s49, 6")
e("s_lshl_b32 s49, s49, 11")
e("s_add_u32 s49, s49, 131072")
e("s_mov_b32 s54, 4096")
e("v_mov_b32 v5, 0xff800000")
e("s_mov_b32 s41, 0x3e38aa3b")
e("s_waitcnt lgkmcnt(0)")
e("s_barrier")
stamp(1)
e("s_cmp_ge_u32 s48, %d"%EARLY)
e("s_cbranch_scc0 L_k")
for p in (range(2,4) if STG==4 else []):
    e("s_cmp_ge_u32 s48, %d"%p); e("s_cbranch_scc0 L_b%d"%p); e("s_barrier"); L.append("L_b%d:"%p)
for ks in range(8):
    e("buffer_load_dwordx4 %s, v125, s[16:19], 0 offen offset:%d"%(vr(E0+4*ks,4),ks*32))
L.append("L_k:")
for p in range(3):
    e("s_cmp_eq_u32 s48, %d"%p); e("s_cbranch_scc0 L_p%d"%p); e("s_setprio %d"%PR[p]); L.append("L_p%d:"%p)

jobs=[]
def pack(dst,src,n):
    o=[]
    for i in range(n): o.append("v_cvt_pk_bf16_f32 v%d, v%d, v%d"%(dst+i,src+2*i,src+2*i+1))
    return o
NOPS=["s_nop 7","s_nop 4"]
def softmax():
    a=ACC0; o=[]
    for s in range(4):
        tt=s>>1; hf=s&1
        o.append("v_mfma_f32_32x32x16_bf16 %s, %s, %s, %s"%(vr(a,16),vr(P2+8*tt+4*hf,4),vr(P1+8*tt+4*hf,4),"0" if s==0 else vr(a,16)))
    o+=NOPS
    t=T0;t2=T0+1
    o.append("v_cndmask_b32 v%d, v%d, v5, s[42:43]"%(a+12,a+12))
    o.append("v_cndmask_b32 v%d, v%d, v5, s[42:43]"%(a+13,a+13))
    o.append("v_max3_f32 v%d, v%d, v%d, v%d"%(t,a,a+1,a+2))
    for i in range(3,13,2): o.append("v_max3_f32 v%d, v%d, v%d, v%d"%(t,t,a+i,a+i+1))
    o.append("v_max_f32 v%d, v%d, v%d"%(t,t,a+13))
    o.append("v_mov_b32 v%d, v%d"%(t2,t)); o.append("s_nop 1")
    o.append("v_permlane32_swap_b32 v%d, v%d"%(t,t2))
    o.append("s_nop 1")
    o.append("v_max_f32 v%d, v%d, v%d"%(t,t,t2))
    o.append("v_mul_f32 v%d, s41, v%d"%(t,t))
    for i in range(14): o.append("v_fma_f32 v%d, v%d, s41, -v%d"%(a+i,a+i,t))
    for i in range(14): o.append("v_exp_f32 v%d, v%d"%(a+i,a+i))
    o.append("v_add_f32 v%d, v%d, v%d"%(t,a,a+1))
    for i in range(2,14): o.append("v_add_f32 v%d, v%d, v%d"%(t,t,a+i))
    o.append("v_mov_b32 v%d, v%d"%(t2,t)); o.append("s_nop 1")
    o.append("v_permlane32_swap_b32 v%d, v%d"%(t,t2))
    o.append("s_nop 1")
    o.append("v_add_f32 v%d, v%d, v%d"%(t,t,t2))
    o.append("v_rcp_f32 v%d, v%d"%(t,t)); o.append("s_nop 0")
    for i in range(14): o.append("v_mul_f32 v%d, v%d, v%d"%(a+i,a+i,t))
    o+=pack(P1,a,7)
    o.append("v_mov_b32 v%d, 0"%(P1+7))
    return o
def final(h):
    o=[]
    for t,a in enumerate((ACC0,ACC1)):
        for s in range(2):
            o.append("v_mfma_f32_32x32x16_bf16 %s, %s, %s, %s"%(vr(a,16),vr(P2+8*t+4*s,4),vr(P1+4*s,4),vr(a,16)))
    o+=NOPS
    for t,a in enumerate((ACC0,ACC1)):
        for i in range(16): o.append("v_max_f32 v%d, 0, v%d"%(a+i,a+i))
        o+=pack(P2+8*t,a,8)
    o.append("v_and_b32 v%d, 7, v1"%(T0+2))
    o.append("v_lshlrev_b32 v%d, 1, v4"%(T0+3))
    o.append("v_xor_b32 v%d, v%d, v%d"%(T0+2,T0+2,T0+3))
    o.append("v_and_b32 v%d, 15, v1"%(T0+3))
    o.append("v_lshlrev_b32 v%d, 7, v%d"%(T0+3,T0+3))
    o.append("v_lshl_add_u32 v%d, v%d, 4, v%d"%(T0,T0+2,T0+3))
    o.append("v_add_u32 v%d, s49, v%d"%(T0,T0))
    o.append("v_lshrrev_b32 v%d, 3, v1"%(T0+2))
    o.append("v_and_b32 v%d, 7, v1"%(T0+3))
    o.append("v_xor_b32 v%d, v%d, v%d"%(T0+3,T0+3,T0+2))
    o.append("v_lshlrev_b32 v%d, 4, v%d"%(T0+3,T0+3))
    o.append("v_lshl_add_u32 v%d, v%d, 7, v%d"%(T0+1,T0+2,T0+3))
    o.append("v_add_u32 v%d, s49, v%d"%(T0+1,T0+1))
    for k,(t,u) in enumerate(((0,0),(0,1),(1,0),(1,1))):
        o.append("v_xor_b32 v%d, %d, v%d"%(T0+2+k,(4*t+u)<<4,T0))
    for rho in range(2):
        o.append("s_mov_b64 exec, s[%d:%d]"%((50,51) if rho==0 else (52,53)))
        for k,(t,u) in enumerate(((0,0),(0,1),(1,0),(1,1))):
            o.append("ds_write_b128 v%d, %s"%(T0+2+k,vr(P2+8*t+4*u,4)))
        o.append("s_mov_b64 exec, -1")
        o.append("s_waitcnt lgkmcnt(0)")
        o.append("ds_read_b128 %s, v%d"%(vr(ACC0+8*rho,4),T0+1))
        o.append("ds_read_b128 %s, v%d offset:1024"%(vr(ACC0+8*rho+4,4),T0+1))
        o.append("s_waitcnt lgkmcnt(0)")
        o.append("buffer_store_dwordx4 %s, v3, s[36:39], %s offen offset:%d"%(vr(ACC0+8*rho,4),("0","s54")[rho],128*h))
        if rho==1: o.append("s_mov_b64 exec, 0xffff")
        o.append("buffer_store_dwordx4 %s, v3, s[36:39], %s offen offset:%d"%(vr(ACC0+8*rho+4,4),("0","s54")[rho],128*h+2048))
    o.append("s_mov_b64 exec, -1")
    return o
for h in range(2):
    for mat,mode,post in ((0,'A',NOPS+pack(P1,ACC0,8)+pack(P1+8,ACC1,8)),
                          (1,'A',NOPS+pack(P2,ACC0,8)+pack(P2+8,ACC1,8)+["s_nop 1"]+softmax()),
                          (2,'B',NOPS+pack(P2,ACC0,8)+pack(P2+8,ACC1,8)),
                          (3,'A',["s_nop 1"]+final(h))):
        for t in range(2):
            for ks in range(8):
                jobs.append((mat,2*h+t,ks,(ACC0,ACC1)[t],mode,post if (t==1 and ks==7) else None))
curaddr={}
def issue(j):
    mat,tile,ks,acc,mode,post=jobs[j]
    slot=RING+4*(j%R)
    base="v6" if mat<2 else "v7"
    ar=T0+6+(1 if mat>=2 else 0)
    key=(mat>=2)
    if curaddr.get(key)!=(tile):
        e("v_xor_b32 v%d, %d, %s"%(ar,tile*64,base)); curaddr[key]=tile
    off=(mat&1)*32768+ks*4096
    e("ds_read_b64_tr_b16 %s, v%d offset:%d"%(vr(slot,2),ar,off))
    e("ds_read_b64_tr_b16 %s, v%d offset:%d"%(vr(slot+2,2),ar,off+1024))
import os
V=os.environ.get("VAR","")
if V=="nomfma":
    jobs=[j for j in jobs if j[5] and j[0]==3]
N=len(jobs)
e("s_waitcnt vmcnt(0)")
stamp(2)
for j in range(min(R-1,N)): issue(j)
for j in range(N):
    mat,tile,ks,acc,mode,post=jobs[j]
    if j+R-1<N: issue(j+R-1)
    e("s_waitcnt lgkmcnt(%d)"%(2*min(R-1,N-1-j)))
    slot=vr(RING+4*(j%R),4); ef=vr(E0+4*ks,4)
    a,b=(slot,ef) if mode=='A' else (ef,slot)
    e("v_mfma_f32_32x32x16_bf16 %s, %s, %s, %s"%(vr(acc,16),a,b,"0" if ks==0 else vr(acc,16)))
    if post:
        for p in post: e(p)
    for c,pos in ((1,CP1),(2,CP2)):
        if j==pos and STG==4:
            e("s_cmp_le_u32 s48, %d"%(3-c)); e("s_cbranch_scc0 L_c%d"%c); e("s_barrier"); L.append("L_c%d:"%c)
if DIAG:
    stamp(3)
    e("s_waitcnt vmcnt(0)")
    stamp(4)
    e("s_waitcnt lgkmcnt(0)")
    e("s_mov_b32 s76, s62"); e("s_and_b32 s77, s63, 0xffff"); e("s_mov_b32 s78, 1048576"); e("s_mov_b32 s79, 0x20000")
    e("v_lshrrev_b32 v10, 6, v0"); e("s_lshl_b32 s3, s2, 4"); e("v_add_u32 v10, s3, v10"); e("v_mul_u32_u24 v10, 64, v10")
    for i in range(10): e("v_mov_b32 v%d, s%d"%(12+i,64+i))
    e("s_mov_b64 exec, 1")
    e("buffer_store_dwordx4 v[12:15], v10, s[76:79], 0 offen")
    e("buffer_store_dwordx4 v[16:19], v10, s[76:79], 0 offen offset:16")
    e("buffer_store_dwordx2 v[20:21], v10, s[76:79], 0 offen offset:32")
NT=os.environ.get("NT","")
if "l" in NT: L=[x+" nt" if ("buffer_load" in x and "s[16:19]" in x) else x for x in L]
if "s" in NT: L=[x+" nt" if ("buffer_store" in x and "s[36:39]" in x) else x for x in L]
SF=os.environ.get("SF","")
if SF: L=[x+" "+SF if ("buffer_store" in x and "s[36:39]" in x) else x for x in L]
if V=="coal":
    import re
    L=[re.sub(r"offset:(\d+)",lambda m:"offset:%d"%(int(m.group(1))*32),x) if ("buffer_load" in x and "s[16:19]" in x) else x for x in L]
    L=[x if x.strip()!="v_lshl_add_u32 v5, v4, 4, v2" else "    v_lshlrev_b32 v5, 8, v3\n    v_sub_u32 v5, v2, v5\n    v_lshl_add_u32 v5, v1, 4, v5" for x in L]
if V=="noload": L=[x for x in L if not ("buffer_load" in x and "s[16:19]" in x)]
if V=="nostore": L=[x for x in L if "buffer_store" not in x]
if V=="nomem": L=[x for x in L if "buffer_store" not in x and not ("buffer_load" in x and "s[16:19]" in x)]
body="\n".join(L)
out=hdr+"""; @launch grid=(256,1,1) block=(1024,1,1) lds=163840
.amdgcn_target "amdgcn-amd-amdhsa--gfx950"
.text
.globl %s_kernel
.p2align 8
.type %s_kernel,@function
%s_kernel:
%s
L_done:
s_endpgm
.section .rodata,"a"
.p2align 6
.amdhsa_kernel %s_kernel
  .amdhsa_next_free_vgpr 128
  .amdhsa_next_free_sgpr 96
  .amdhsa_accum_offset 128
  .amdhsa_group_segment_fixed_size 0
  .amdhsa_kernarg_size 64
  .amdhsa_user_sgpr_count 2
  .amdhsa_user_sgpr_kernarg_segment_ptr 1
  .amdhsa_system_sgpr_workgroup_id_x 1
.end_amdhsa_kernel
"""%(NAME,NAME,NAME,body,NAME)
open("cdna_kernels/%s%s.s"%(NAME,V),"w").write(out)
```
